```python
import torch

def _softmax(x, axis=-1):
    return torch.softmax(x, dim=axis)
def _gelu(x):
    return torch.nn.functional.gelu(x, approximate="tanh")
def _silu(x):
    return torch.nn.functional.silu(x)
def _sigmoid(x):
    return torch.sigmoid(x)
def _layernorm(x, axis=-1, eps=1e-5):
    m = x.mean(dim=axis, keepdim=True)
    v = x.var(dim=axis, keepdim=True, unbiased=False)
    return (x - m) / torch.sqrt(v + eps)
def _scatter_add(tgt, idx, src, axis=0):
    return tgt.clone().index_add_(axis, idx, src)
def _segment_sum(src, seg, n):
    out = torch.zeros((n,) + src.shape[1:], dtype=src.dtype)
    return out.index_add_(0, seg, src)
def _pad(x, pw):
    flat = tuple(v for pair in reversed(pw) for v in pair)
    return torch.nn.functional.pad(x, flat)

kernel_name = 'sequential_preLN__ssm_conv_h3__dense_activation_gelu__prompt'

def setup_inputs():

    _w = (lambda a: (lambda t: t.to(torch.bfloat16) if t.is_floating_point() else t)(torch.as_tensor(a)))
    def _A_setup():
        B, S, D = 1, 2048, 640
        ks = 4
        return {
            "q": _w((lambda *s: torch.randn(*s, dtype=torch.bfloat16) * 0.05)(B, S, D)),
            "k": _w((lambda *s: torch.randn(*s, dtype=torch.bfloat16) * 0.2)(B, S, D)),
            "v": _w((lambda *s: torch.randn(*s, dtype=torch.bfloat16) * 0.2)(B, S, D)),
            "shift_k": _w((lambda *s: torch.randn(*s, dtype=torch.bfloat16) * 0.2)(D, ks) * 0.5),
            "ssm_k": _w((lambda *s: torch.randn(*s, dtype=torch.bfloat16) * 0.8)(D, S) * (1.0 / S ** 0.5)),
            "ssm_D": _w((lambda *s: torch.randn(*s, dtype=torch.bfloat16) * 0.2)(D)),
        }
    _A_in = _A_setup()

    def _B_setup():
        B, S, D, F = 1, 2048, 640, 1536
        return {
            "x": _w((lambda *s: torch.randn(*s, dtype=torch.bfloat16) * 0.05)(B, S, D)),
            "w1": _w((lambda *s: torch.randn(*s, dtype=torch.bfloat16) * 0.4)(D, F) * (D ** -0.5)),
            "b1": _w((lambda *s: torch.randn(*s, dtype=torch.bfloat16) * 12.8)(F) * 0.01),
            "w2": _w((lambda *s: torch.randn(*s, dtype=torch.bfloat16) * 0.2)(F, D) * (F ** -0.5)),
            "b2": _w((lambda *s: torch.randn(*s, dtype=torch.bfloat16) * 3.2)(D) * 0.01),
        }
    _B_in = _B_setup()

    return {
        "A_q": _A_in["q"],
        "A_k": _A_in["k"],
        "A_v": _A_in["v"],
        "A_shift_k": _A_in["shift_k"],
        "A_ssm_k": _A_in["ssm_k"],
        "A_ssm_D": _A_in["ssm_D"],
        "B_x": _B_in["x"],
        "B_w1": _B_in["w1"],
        "B_b1": _B_in["b1"],
        "B_w2": _B_in["w2"],
        "B_b2": _B_in["b2"],
    }

def reference(A_q, A_k, A_v, A_shift_k, A_ssm_k, A_ssm_D, B_x, B_w1, B_b1, B_w2, B_b2):
    def _A_ref(q, k, v, shift_k, ssm_k, ssm_D):
        B, S, D = q.shape
        ks = shift_k.shape[-1]
        k_pad = _pad(k, ((0, 0), (ks - 1, 0), (0, 0)))
        k_shift = torch.zeros_like(k)
        for t in range(ks):
            k_shift = k_shift + k_pad[:, t:t + S, :] * shift_k[:, ks - 1 - t][None, None, :]
        kv = k_shift * v
        L = 2 * S
        kv_pad = _pad(kv, ((0, 0), (0, S), (0, 0)))
        kf_pad = _pad(ssm_k, ((0, 0), (0, S)))
        kv_f = (lambda x, axes=(-2,-1): torch.fft.rfft2(x.float(), dim=axes))(kv_pad[:, None, :, :], axes=(1, 2))
        kf_f = (lambda x, axes=(-2,-1): torch.fft.rfft2(x.float(), dim=axes))(kf_pad[:, None, :], axes=(1, 2))
        kf_f = (lambda x, *d: x.permute(*d))(kf_f, 1, 2, 0)
        y_f = kv_f * kf_f[None, :, :, :]
        y = (lambda x, s, axes=(-2,-1): torch.fft.irfft2(x, s=s, dim=axes).to(torch.bfloat16))(y_f, (1, L), axes=(1, 2))[:, 0, :S, :]
        y = y + kv * ssm_D[None, None, :]
        return q * y

    def _B_ref(x, w1, b1, w2, b2):
        h = torch.einsum("bsd,df->bsf", x, w1) + b1
        h = _gelu(h)
        return torch.einsum("bsf,fd->bsd", h, w2) + b2

    x = A_q
    h = x + _A_ref(_layernorm(x, axis=-1), A_k, A_v, A_shift_k, A_ssm_k, A_ssm_D)
    h2 = h + _B_ref(_layernorm(h, axis=-1), B_w1, B_b1, B_w2, B_b2)
    return h2
```

```python
import re

REG_RE = re.compile(r'^(-|abs\()?([vas])(\d+)\)?$')
RNG_RE = re.compile(r'^(-)?([vas])\[(\d+):(\d+)\]$')

def regs_of(tok):
    tok = tok.strip()
    m = REG_RE.match(tok)
    if m: return {(m.group(2), int(m.group(3)))}
    m = RNG_RE.match(tok)
    if m: return {(m.group(2), i) for i in range(int(m.group(3)), int(m.group(4)) + 1)}
    if tok in ('vcc', 'vcc_lo', 'vcc_hi'): return {('s', 'vcc')}
    if tok in ('exec', 'exec_lo', 'exec_hi'): return {('s', 'exec')}
    if tok == 'm0': return {('s', 'm0')}
    return set()

TRANS = ('v_exp_f32', 'v_log_f32', 'v_rcp_f32', 'v_rsq_f32', 'v_sqrt_f32', 'v_sin_f32', 'v_cos_f32', 'v_rcp_iflag_f32')

class Ins:
    __slots__ = ('text', 'mn', 'ops', 'kind', 'wr', 'rd', 'states', 'mods', 'passes', 'srcC', 'storedata')
    def __init__(self, text):
        self.text = text
        t = text.split(';')[0].strip()
        self.kind = 'other'; self.wr = set(); self.rd = set(); self.states = 1
        self.mn = ''; self.ops = []; self.mods = ''; self.passes = 0; self.srcC = set(); self.storedata = set()
        if not t or t.endswith(':') or t.startswith('.'):
            self.kind = 'label' if t.endswith(':') else 'dir'; self.states = 0; return
        parts = t.split(None, 1)
        mn = parts[0]; rest = parts[1] if len(parts) > 1 else ''
        self.mn = mn
        ops = [o.strip() for o in rest.split(',')] if rest else []
        if ops:
            last = ops[-1].split(None, 1)
            ops[-1] = last[0]; self.mods = last[1] if len(last) > 1 else ''
        self.ops = ops
        R = lambda i: regs_of(ops[i]) if i < len(ops) else set()
        base = re.sub(r'_(e32|e64|dpp|sdwa)$', '', mn)
        if mn == 's_nop':
            self.kind = 'nop'; self.states = int(ops[0], 0) + 1
        elif mn.startswith('v_mfma'):
            self.kind = 'mfma'; self.wr = R(0); self.rd = R(1) | R(2) | R(3); self.srcC = R(3)
            self.passes = 8 if '32x32' in mn else 4
        elif mn.startswith('v_'):
            self.kind = 'valu'
            if base.startswith('v_cmp'):
                self.wr = R(0); self.rd = set().union(*[R(i) for i in range(1, len(ops))])
            elif base in ('v_readfirstlane_b32', 'v_readlane_b32'):
                self.wr = R(0); self.rd = set().union(*[R(i) for i in range(1, len(ops))])
            elif base in ('v_add_co_u32', 'v_sub_co_u32', 'v_addc_co_u32', 'v_subb_co_u32'):
                self.wr = R(0) | R(1); self.rd = set().union(*[R(i) for i in range(2, len(ops))])
            elif base.startswith('v_permlane') and 'swap' in base:
                self.wr = R(0) | R(1); self.rd = R(0) | R(1)
            else:
                self.wr = R(0); self.rd = set().union(*[R(i) for i in range(1, len(ops))]) if len(ops) > 1 else set()
                if base in ('v_fmac_f32', 'v_dot2c_f32_bf16', 'v_pk_fmac_f16', 'v_writelane_b32'): self.rd |= R(0)
                if base == 'v_cndmask_b32' and len(ops) == 3: self.rd |= {('s', 'vcc')}
        elif mn.startswith('ds_'):
            self.kind = 'ds'
            if mn.startswith('ds_read') or mn.startswith('ds_bpermute') or mn.startswith('ds_permute') or mn.startswith('ds_swizzle'):
                self.wr = R(0); self.rd = set().union(*[R(i) for i in range(1, len(ops))])
            else:
                self.rd = set().union(*[R(i) for i in range(0, len(ops))])
        elif mn.startswith('buffer_') or mn.startswith('global_'):
            self.kind = 'vmem'
            allr = set().union(*[R(i) for i in range(len(ops))]) if ops else set()
            lds = ' lds' in (' ' + self.mods)
            if mn.startswith('buffer_load') and not lds:
                self.wr = R(0); self.rd = set().union(*[R(i) for i in range(1, len(ops))])
            elif mn.startswith('global_load') and 'lds' not in mn:
                self.wr = R(0); self.rd = set().union(*[R(i) for i in range(1, len(ops))])
            elif mn.startswith('buffer_store'):
                self.rd = allr
                if 'x3' in mn or 'x4' in mn: self.storedata = R(0)
            elif mn.startswith('global_store'):
                self.rd = allr
                if 'x3' in mn or 'x4' in mn: self.storedata = R(1)
            elif 'atomic' in mn:
                self.rd = allr
                if 'sc0' in self.mods: self.wr = R(0)
            else:
                self.rd = allr
            if lds or 'lds' in mn: self.rd |= {('s', 'm0')}
        elif mn.startswith('s_'):
            self.kind = 'salu'
            if mn.startswith('s_cmp') or mn.startswith('s_bitcmp') or mn in ('s_waitcnt', 's_barrier', 's_endpgm', 's_setprio', 's_sleep') or mn.startswith('s_cbranch') or mn == 's_branch':
                self.rd = set().union(*[R(i) for i in range(len(ops))]) if ops else set()
            else:
                self.wr = R(0); self.rd = set().union(*[R(i) for i in range(1, len(ops))]) if len(ops) > 1 else set()
                if 'saveexec' in mn: self.wr |= {('s', 'exec')}
    @property
    def base(self): return re.sub(r'_(e32|e64|dpp|sdwa)$', '', self.mn)
    def is_trans(self): return self.kind == 'valu' and self.base in TRANS
    def is_dpp(self): return self.kind == 'valu' and (self.mn.endswith('_dpp') or 'row_' in self.mods or 'quad_perm' in self.mods)
    def is_dot(self): return self.kind == 'valu' and self.base.startswith('v_dot')

def isv(r): return r[0] in ('v', 'a')
def V(s): return {r for r in s if isv(r)}
def S(s): return {r for r in s if r[0] == 's'}

def need_states(p, c):
    n = 0
    if p.kind == 'valu':
        pw = V(p.wr); sw = S(p.wr)
        if c.kind == 'mfma' and pw & c.rd: n = max(n, 2)
        if c.kind == 'vmem' and sw & c.rd: n = max(n, 5)
        if c.kind == 'valu' and sw & c.rd:
            n = max(n, 4 if c.base in ('v_readlane_b32', 'v_writelane_b32') and (sw & regs_of(c.ops[-1])) else 2)
        if c.kind == 'valu' and c.base in ('v_readfirstlane_b32', 'v_readlane_b32') and pw & c.rd: n = max(n, 1)
        if c.kind == 'salu' and sw & c.rd: n = max(n, 1)
        if p.is_trans() and c.kind in ('valu',) and pw & (c.rd): n = max(n, 1)
        if p.is_trans() and c.kind in ('ds', 'vmem', 'mfma') and pw & (c.rd): n = max(n, 2 if c.kind == 'mfma' else 1)
        if c.is_dpp() and pw & c.rd: n = max(n, 2)
        if c.kind == 'valu' and c.base.startswith('v_permlane') and pw & c.rd: n = max(n, 2)
        if p.is_dot():
            if c.kind == 'valu' and c.base == p.base:
                ab = regs_of(c.ops[1]) | regs_of(c.ops[2])
                if pw & ab: n = max(n, 3)
            elif (pw & (c.rd | c.wr)): n = max(n, 3)
        if ('s', 'exec') in sw: n = max(n, 5)
    if p.kind == 'mfma':
        big = {4: 8, 8: 12}[p.passes]
        if c.kind == 'mfma':
            ab = regs_of(c.ops[1]) | regs_of(c.ops[2])
            if p.wr & ab: n = max(n, big)
            if p.wr & c.srcC and p.wr != c.srcC: n = max(n, big - 2)
            if p.wr & c.srcC and p.wr == c.srcC and p.passes != c.passes: n = max(n, big - 2)
            if p.wr & c.wr and not (p.wr & c.srcC): n = max(n, big)
        elif c.kind in ('valu', 'ds', 'vmem'):
            if p.wr & (c.rd | c.wr): n = max(n, big)
            if c.kind == 'valu' and p.srcC & c.wr: n = max(n, {4: 3, 8: 7}[p.passes])
            if c.kind in ('ds', 'vmem') and p.srcC & c.wr: n = max(n, big)
    if p.kind == 'vmem' and p.storedata:
        if c.kind == 'valu' and p.storedata & c.wr: n = max(n, 2)
        elif p.storedata & c.wr: n = max(n, 1)
    if p.kind == 'salu' and ('s', 'm0') in p.wr and c.kind in ('vmem',) and ('s', 'm0') in c.rd: n = max(n, 1)
    if p.kind == 'salu' and ('s', 'exec') in p.wr and (c.is_dpp()): n = max(n, 0)
    return n

class Prog:
    def __init__(self):
        self.lines = []
    def __call__(self, text):
        for ln in text.split('\n'):
            ln = ln.strip()
            if ln: self.lines.append(ln)
    def label(self, name): self.lines.append(name + ':')
    def raw(self, text): self.lines.append(text)
    def finalize(self, window=24):
        out = []; hist = []
        npad = 0
        for ln in self.lines:
            ins = Ins(ln)
            if ins.kind in ('label', 'dir'):
                out.append(ln if ins.kind == 'dir' or True else ln)
                continue
            dist = 0; need = 0
            for p in reversed(hist):
                if dist >= window: break
                n = need_states(p, ins)
                if n > dist: need = max(need, n - dist)
                dist += p.states
            while need > 0:
                k = min(need, 16)
                nop = Ins(f's_nop {k-1}'); hist.append(nop); out.append(f'  s_nop {k-1}'); npad += 1
                need -= k
            hist.append(ins); out.append('  ' + ln)
            if len(hist) > 64: hist = hist[-64:]
            if ins.mn in ('s_endpgm', 's_branch'): hist = []
        self.npad = npad
        return '\n'.join(out) + '\n'

class DSQ:
    def __init__(self, p): self.p = p; self.n = 0; self.done = 0
    def issue(self, text):
        self.p(text); self.n += 1; return self.n
    def wait(self, ticket):
        if ticket <= self.done: return
        out = self.n - ticket
        self.p(f's_waitcnt lgkmcnt({min(out, 15)})')
        self.done = ticket if out <= 15 else self.n - 15
    def wait_all(self):
        self.p('s_waitcnt lgkmcnt(0)'); self.done = self.n

class VMQ:
    def __init__(self, p): self.p = p; self.n = 0; self.done = 0
    def issue(self, text):
        self.p(text); self.n += 1
        assert self.n - self.done <= 63 or True
        return self.n
    def wait(self, ticket):
        if ticket <= self.done: return
        out = self.n - ticket
        assert out <= 63
        self.p(f's_waitcnt vmcnt({out})')
        self.done = ticket
    def wait_all(self):
        self.p('s_waitcnt vmcnt(0)'); self.done = self.n
```

```python
import sys
sys.path.insert(0, 'dev')
from asmlib import Prog, DSQ, VMQ

S, D, F = 2048, 640, 1536
WS_KVT = 0x000000
WS_XT  = 0x280000
WS_HT  = 0x500000
WS_ST  = 0x780000
WS_CS  = 0x784000
WS_HF  = 0x800000
SZ_SD = S * D * 2

import struct
def f32(x): return '0x%08x' % struct.unpack('<I', struct.pack('<f', x))[0]

def srd(p, r, base, nbytes):
    p(f's_mov_b32 s{r}, s{base}')
    p(f's_and_b32 s{r+1}, s{base+1}, 0xffff')
    p(f's_mov_b32 s{r+2}, {nbytes}')
    p(f's_mov_b32 s{r+3}, 0x20000')

def srd_ws(p, r, wsbase, off, nbytes):
    p(f's_add_u32 s{r}, s{wsbase}, {off}')
    p(f's_addc_u32 s{r+1}, s{wsbase+1}, 0')
    p(f's_and_b32 s{r+1}, s{r+1}, 0xffff')
    p(f's_mov_b32 s{r+2}, {nbytes}')
    p(f's_mov_b32 s{r+3}, 0x20000')

def header(p, name):
    p.raw(f'.globl {name}'); p.raw('.p2align 8'); p.raw(f'.type {name},@function'); p.label(name)

def descriptor(name, vgpr, sgpr=96, accum=None):
    accum = accum if accum is not None else (vgpr + 3) // 4 * 4
    return f'''.amdhsa_kernel {name}
  .amdhsa_next_free_vgpr {vgpr}
  .amdhsa_next_free_sgpr {sgpr}
  .amdhsa_accum_offset {accum}
  .amdhsa_group_segment_fixed_size 0
  .amdhsa_kernarg_size 112
  .amdhsa_user_sgpr_count 2
  .amdhsa_user_sgpr_kernarg_segment_ptr 1
  .amdhsa_system_sgpr_workgroup_id_x 1
  .amdhsa_float_denorm_mode_32 3
.end_amdhsa_kernel
'''

N_TILE, N_STAT, N_CS = 320, 128, 24
def gen_k0():
    p = Prog(); name = 'k0_kernel'; header(p, name)
    p(f's_cmp_ge_u32 s2, {N_TILE + N_STAT + N_CS}')
    p('s_cbranch_scc1 K0_END')
    p('s_load_dwordx4 s[4:7], s[0:1], 0')
    p('s_load_dwordx4 s[8:11], s[0:1], 16')
    p('s_load_dwordx2 s[12:13], s[0:1], 56')
    p('s_load_dwordx2 s[14:15], s[0:1], 104')
    p('v_and_b32 v1, 63, v0')
    p('v_lshrrev_b32 v2, 6, v0')
    p(f's_cmp_ge_u32 s2, {N_TILE + N_STAT}')
    p('s_cbranch_scc1 K0_CS')
    p(f's_cmp_ge_u32 s2, {N_TILE}')
    p('s_cbranch_scc1 K0_STAT')
    p('s_mul_hi_u32 s40, s2, 0x1999999a')
    p('s_mul_i32 s41, s40, 10')
    p('s_sub_u32 s41, s2, s41')
    p('v_and_b32 v3, 7, v1')
    p('v_lshrrev_b32 v4, 3, v1')
    p('s_lshl_b32 s41, s41, 6')
    p('v_lshlrev_b32 v5, 4, v2')
    p('v_lshl_add_u32 v5, v3, 1, v5')
    p('v_add_u32 v5, s41, v5')
    p('s_lshl_b32 s40, s40, 6')
    p('v_lshl_add_u32 v6, v4, 3, s40')
    p('s_movk_i32 s42, 1280')
    p('v_mul_lo_u32 v7, v6, s42')
    p('v_lshl_add_u32 v7, v5, 1, v7')
    p('v_subrev_u32 v8, 3840, v7')
    p('v_lshlrev_b32 v9, 3, v5')
    p('v_lshlrev_b32 v37, 12, v5')
    p('v_lshl_add_u32 v37, v6, 1, v37')
    p('s_waitcnt lgkmcnt(0)')
    srd(p, 16, 4, SZ_SD); srd(p, 20, 6, SZ_SD); srd(p, 24, 8, SZ_SD); srd(p, 28, 10, D * 4 * 2)
    srd_ws(p, 32, 14, WS_KVT, SZ_SD); srd_ws(p, 36, 14, WS_XT, SZ_SD)
    p('s_movk_i32 s43, 5120'); p('s_movk_i32 s44, 4096')
    p('buffer_load_dwordx4 v[40:43], v9, s[28:31], 0 offen')
    for i in range(3): p(f'buffer_load_dword v{10+i}, v8, s[20:23], 0 offen offset:{1280*i}')
    for i in range(8):
        so = '0' if i < 4 else 's43'
        p(f'buffer_load_dword v{13+i}, v7, s[20:23], {so} offen offset:{1280*(i%4)}')
    for i in range(8):
        so = '0' if i < 4 else 's43'
        p(f'buffer_load_dword v{21+i}, v7, s[24:27], {so} offen offset:{1280*(i%4)}')
    for i in range(8):
        so = '0' if i < 4 else 's43'
        p(f'buffer_load_dword v{29+i}, v7, s[16:19], {so} offen offset:{1280*(i%4)}')
    p('s_mov_b32 s45, 0x05040100'); p('s_mov_b32 s46, 0x07060302')
    p('s_waitcnt vmcnt(16)')
    p('v_lshlrev_b32 v44, 16, v40'); p('v_lshlrev_b32 v45, 16, v42')
    p('v_and_b32 v46, 0xffff0000, v40'); p('v_and_b32 v47, 0xffff0000, v42')
    p('v_lshlrev_b32 v48, 16, v41'); p('v_lshlrev_b32 v49, 16, v43')
    p('v_and_b32 v50, 0xffff0000, v41'); p('v_and_b32 v51, 0xffff0000, v43')
    for i in range(11):
        p(f'v_lshlrev_b32 v{52+2*i}, 16, v{10+i}'); p(f'v_and_b32 v{53+2*i}, 0xffff0000, v{10+i}')
    KU = lambda i: f'v[{52+2*i}:{53+2*i}]'
    W = lambda j: f'v[{44+2*j}:{45+2*j}]'
    R = lambda t: f'v[{80+2*t}:{81+2*t}]'
    for t in range(8):
        p(f'v_pk_mul_f32 {R(t)}, {W(0)}, {KU(t+3)}')
        p(f'v_pk_fma_f32 {R(t)}, {W(1)}, {KU(t+2)}, {R(t)}')
        p(f'v_pk_fma_f32 {R(t)}, {W(2)}, {KU(t+1)}, {R(t)}')
        p(f'v_pk_fma_f32 {R(t)}, {W(3)}, {KU(t)}, {R(t)}')
    p('s_waitcnt vmcnt(8)')
    for t in range(8):
        p(f'v_lshlrev_b32 v76, 16, v{21+t}'); p(f'v_and_b32 v77, 0xffff0000, v{21+t}')
        p(f'v_pk_mul_f32 {R(t)}, {R(t)}, v[76:77]')
    for q in range(4):
        p(f'v_cvt_pk_bf16_f32 v{100+q}, v{80+4*q}, v{82+4*q}')
        p(f'v_cvt_pk_bf16_f32 v{104+q}, v{81+4*q}, v{83+4*q}')
    p('buffer_store_dwordx4 v[100:103], v37, s[32:35], 0 offen')
    p('buffer_store_dwordx4 v[104:107], v37, s[32:35], s44 offen')
    p('s_waitcnt vmcnt(2)')
    for q in range(4):
        p(f'v_perm_b32 v{108+q}, v{30+2*q}, v{29+2*q}, s45')
        p(f'v_perm_b32 v{112+q}, v{30+2*q}, v{29+2*q}, s46')
    p('buffer_store_dwordx4 v[108:111], v37, s[36:39], 0 offen')
    p('buffer_store_dwordx4 v[112:115], v37, s[36:39], s44 offen')
    p('s_endpgm')
    p.label('K0_STAT')
    p(f's_sub_u32 s40, s2, {N_TILE}')
    p('s_lshl_b32 s40, s40, 4')
    p('v_lshrrev_b32 v3, 4, v1')
    p('v_lshl_add_u32 v3, v2, 2, v3')
    p('v_add_u32 v3, s40, v3')
    p('v_and_b32 v4, 15, v1')
    p('s_movk_i32 s42, 1280')
    p('v_mul_lo_u32 v5, v3, s42')
    p('v_lshl_add_u32 v5, v4, 4, v5')
    p('s_waitcnt lgkmcnt(0)')
    srd(p, 16, 4, SZ_SD); srd_ws(p, 20, 14, WS_ST, 16384)
    for q in range(5): p(f'buffer_load_dwordx4 v[{8+4*q}:{11+4*q}], v5, s[16:19], 0 offen offset:{256*q}')
    for q in range(5):
        p(f's_waitcnt vmcnt({4-q})')
        for e in range(4):
            p(f'v_lshlrev_b32 v{32+8*q+2*e}, 16, v{8+4*q+e}'); p(f'v_and_b32 v{33+8*q+2*e}, 0xffff0000, v{8+4*q+e}')
    p('v_pk_add_f32 v[72:73], v[32:33], v[34:35]')
    for i in range(2, 20): p(f'v_pk_add_f32 v[72:73], v[72:73], v[{32+2*i}:{33+2*i}]')
    p('v_add_f32 v72, v72, v73')
    for r in (8, 4, 2, 1): p(f'v_add_f32_dpp v72, v72, v72 row_ror:{r} row_mask:0xf bank_mask:0xf')
    p(f'v_mul_f32 v72, {f32(1.0/640)}, v72')
    p('v_sub_f32 v74, 0, v72'); p('v_mov_b32 v75, v74')
    for i in range(20): p(f'v_pk_add_f32 v[{32+2*i}:{33+2*i}], v[{32+2*i}:{33+2*i}], v[74:75]')
    p('v_pk_mul_f32 v[76:77], v[32:33], v[32:33]')
    for i in range(1, 20): p(f'v_pk_fma_f32 v[76:77], v[{32+2*i}:{33+2*i}], v[{32+2*i}:{33+2*i}], v[76:77]')
    p('v_add_f32 v76, v76, v77')
    for r in (8, 4, 2, 1): p(f'v_add_f32_dpp v76, v76, v76 row_ror:{r} row_mask:0xf bank_mask:0xf')
    p(f'v_mov_b32 v77, {f32(1e-5)}')
    p(f'v_fmac_f32 v77, {f32(1.0/640)}, v76')
    p('v_rsq_f32 v77, v77')
    p('v_mul_f32 v78, v74, v77')
    p('v_lshlrev_b32 v5, 2, v3')
    p('v_cmp_eq_u32 vcc, 0, v4')
    p('s_and_saveexec_b64 s[44:45], vcc')
    p('s_cbranch_execz K0_STAT_END')
    p('s_movk_i32 s46, 8192')
    p('buffer_store_dword v77, v5, s[20:23], 0 offen')
    p('buffer_store_dword v78, v5, s[20:23], s46 offen')
    p.label('K0_STAT_END')
    p('s_endpgm')
    p.label('K0_CS')
    p(f's_sub_u32 s40, s2, {N_TILE + N_STAT}')
    p('s_lshl_b32 s40, s40, 7')
    p('v_and_b32 v3, 7, v0')
    p('v_lshrrev_b32 v4, 3, v0')
    p('s_mov_b32 s42, 61440')
    p('v_mul_lo_u32 v5, v4, s42')
    p('v_lshl_add_u32 v5, v3, 4, v5')
    p('v_add_u32 v5, s40, v5')
    p('s_waitcnt lgkmcnt(0)')
    srd(p, 16, 12, D * F * 2); srd_ws(p, 20, 14, WS_CS, F * 4)
    p('s_mov_b32 s43, 0')
    for i in range(20):
        p(f'buffer_load_dwordx4 v[{8+4*i}:{11+4*i}], v5, s[16:19], s43 offen')
        p('s_add_u32 s43, s43, 3072')
    for i in range(8): p(f'v_mov_b32 v{96+i}, 0')
    for i in range(20):
        p(f's_waitcnt vmcnt({19-i})')
        for e in range(4):
            p(f'v_lshlrev_b32 v104, 16, v{8+4*i+e}'); p(f'v_and_b32 v105, 0xffff0000, v{8+4*i+e}')
            p(f'v_pk_add_f32 v[{96+2*e}:{97+2*e}], v[{96+2*e}:{97+2*e}], v[104:105]')
    p('v_lshlrev_b32 v6, 8, v4'); p('v_lshl_add_u32 v6, v3, 5, v6')
    p('ds_write_b128 v6, v[96:99]'); p('ds_write_b128 v6, v[100:103] offset:16')
    p('s_waitcnt lgkmcnt(0)'); p('s_barrier')
    p('v_cmp_gt_u32 vcc, 64, v0')
    p('s_and_saveexec_b64 s[44:45], vcc')
    p('s_cbranch_execz K0_END')
    p('v_lshlrev_b32 v6, 2, v0')
    for i in range(32): p(f'ds_read_b32 v{8+i}, v6 offset:{256*i}')
    p('s_waitcnt lgkmcnt(0)')
    for i in range(1, 32): p(f'v_add_f32 v8, v8, v{8+i}')
    p('v_lshlrev_b32 v7, 2, v0'); p('s_lshl_b32 s40, s40, 1'); p('v_add_u32 v7, s40, v7')
    p('buffer_store_dword v8, v7, s[20:23], 0 offen')
    p.label('K0_END')
    p('s_endpgm')
    return p.finalize(), descriptor(name, 120), f'; @launch kernel={name} grid=({N_TILE+N_STAT+N_CS},1,1) block=(256,1,1) lds=8192'

K1_COPY = 4160; K1_UB = 16640; K1_RED = 21248; K1_LDS = K1_RED + 24 * 1024
def gen_k1():
    p = Prog(); name = 'k1_kernel'; header(p, name)
    p('s_cmp_ge_u32 s2, 640'); p('s_cbranch_scc1 K1_END')
    p('s_load_dwordx4 s[4:7], s[0:1], 32')
    p('s_load_dwordx2 s[8:9], s[0:1], 104')
    p('v_and_b32 v1, 63, v0')
    p('v_lshrrev_b32 v2, 6, v0')
    p('s_nop 0')
    p('v_readfirstlane_b32 s33, v2')
    p('v_and_b32 v3, 15, v1')
    p('v_lshrrev_b32 v48, 4, v1')
    p('s_lshl_b32 s36, s2, 12')
    p('s_lshl_b32 s37, s33, 10')
    p('s_add_u32 s38, s36, s37')
    p('v_lshl_add_u32 v49, v1, 4, s38')
    p('v_lshlrev_b32 v50, 5, v3'); p('v_lshl_add_u32 v50, v48, 3, v50')
    p('v_add_u32 v51, s38, v50')
    p('v_lshlrev_b32 v52, 1, v50')
    p('s_lshl_b32 s39, s33, 11')
    p('v_add_u32 v52, s39, v52')
    p('s_lshl_b32 s40, s2, 1'); p('s_and_b32 s40, s40, 0xfffffffc')
    p('s_waitcnt lgkmcnt(0)')
    p('s_load_dword s34, s[6:7], s40')
    srd(p, 12, 4, SZ_SD); srd_ws(p, 16, 8, WS_KVT, SZ_SD); srd_ws(p, 20, 8, WS_XT, SZ_SD)
    srd_ws(p, 24, 8, WS_ST, 16384); srd_ws(p, 28, 8, WS_HT, SZ_SD)
    vm = VMQ(p)
    tL0 = vm.issue('buffer_load_dwordx4 v[4:7], v49, s[12:15], 0 offen')
    tL2 = vm.issue('buffer_load_dwordx4 v[8:11], v49, s[12:15], 0 offen offset:4')
    tL4 = vm.issue('buffer_load_dwordx4 v[12:15], v49, s[12:15], 0 offen offset:8')
    tU = vm.issue('buffer_load_dwordx4 v[24:27], v49, s[16:19], 0 offen')
    p('s_movk_i32 s41, 8192')
    vm.issue('buffer_load_dwordx2 v[28:29], v51, s[20:23], 0 offen')
    vm.issue('buffer_load_dwordx2 v[30:31], v51, s[20:23], 0 offen offset:512')
    vm.issue('buffer_load_dwordx4 v[32:35], v52, s[24:27], 0 offen')
    vm.issue('buffer_load_dwordx4 v[36:39], v52, s[24:27], 0 offen offset:1024')
    vm.issue('buffer_load_dwordx4 v[40:43], v52, s[24:27], s41 offen')
    tE = vm.issue('buffer_load_dwordx4 v[44:47], v52, s[24:27], s41 offen offset:1024')
    p('v_lshlrev_b32 v53, 4, v1'); p('v_add_u32 v53, s37, v53'); p('v_add_u32 v53, 32, v53')
    p('v_bfe_u32 v54, v1, 2, 2')
    p('v_sub_u32 v55, 4, v54'); p('v_and_b32 v55, 3, v55')
    p(f'v_mul_u32_u24 v55, {K1_COPY}, v55')
    p('v_min_u32 v56, 1, v54'); p('v_lshlrev_b32 v56, 3, v56')
    p('v_sub_u32 v55, v55, v56')
    p('v_lshlrev_b32 v56, 4, v48'); p('v_sub_u32 v55, v55, v56')
    p('v_and_b32 v56, 3, v1'); p('v_lshl_add_u32 v55, v56, 3, v55')
    p('s_lshl_b32 s42, s33, 7')
    p('s_add_u32 s43, s42, 56')
    p('v_add_u32 v55, s43, v55')
    p('v_lshlrev_b32 v56, 5, v3'); p('v_lshl_add_u32 v56, v48, 4, v56')
    p(f's_sub_u32 s43, {K1_UB + 384}, s42')
    p('v_add_u32 v56, s43, v56')
    p(f's_add_u32 s43, s37, {K1_UB + 480}')
    p('v_add_u32 v57, s43, v50')
    p('v_lshlrev_b32 v58, 4, v1')
    p('v_mov_b32 v16, v53'); p('v_mov_b32 v17, v55'); p('v_mov_b32 v18, v56'); p('v_mov_b32 v19, v57')
    p('v_mov_b32 v20, v58'); p('v_mov_b32 v21, v51')
    vLW, vKA, vUB, vKV, vRL, vE = 'v16', 'v17', 'v18', 'v19', 'v20', 'v21'
    p('v_mov_b32 v60, 0'); p('v_mov_b32 v61, 0'); p('v_mov_b32 v62, 0'); p('v_mov_b32 v63, 0')
    p('s_cmp_eq_u32 s33, 1'); p('s_cbranch_scc0 K1_NOZ')
    p('v_cmp_gt_u32 vcc, 30, v1'); p('s_and_saveexec_b64 s[44:45], vcc')
    p(f'ds_write_b128 {vRL}, v[60:63] offset:{K1_UB}')
    p('s_mov_b64 exec, s[44:45]')
    p.label('K1_NOZ')
    vm.wait(tL2)
    for i in range(4): p(f'v_alignbit_b32 v{64+i}, v{8+i}, v{4+i}, 16')
    p(f'ds_write_b128 {vLW}, v[4:7]')
    p(f'ds_write_b128 {vLW}, v[8:11] offset:{2*K1_COPY}')
    p(f'ds_write_b128 {vLW}, v[64:67] offset:{K1_COPY}')
    vm.wait(tL4)
    for i in range(4): p(f'v_alignbit_b32 v{68+i}, v{12+i}, v{8+i}, 16')
    p(f'ds_write_b128 {vLW}, v[68:71] offset:{3*K1_COPY}')
    p('s_cmp_eq_u32 s33, 0'); p('s_cbranch_scc0 K1_NOP')
    p('v_readfirstlane_b32 s46, v4'); p('v_readfirstlane_b32 s47, v5')
    p('s_nop 1')
    p('s_lshl_b32 s48, s46, 16')
    p('s_lshr_b32 s49, s46, 16'); p('s_lshl_b32 s50, s47, 16'); p('s_or_b32 s49, s49, s50')
    p('v_cmp_eq_u32 vcc, 3, v1'); p('v_mov_b32 v72, s48'); p('v_cndmask_b32 v62, 0, v72, vcc')
    p('v_mov_b32 v73, s49'); p('v_cndmask_b32 v63, 0, v73, vcc')
    p('v_cmp_eq_u32 vcc, 2, v1'); p('v_mov_b32 v73, s46'); p('v_cndmask_b32 v63, v63, v73, vcc')
    p('v_cmp_eq_u32 vcc, 1, v1'); p('v_cndmask_b32 v63, v63, v72, vcc')
    p(f'v_mul_u32_u24 v74, {K1_COPY}, v1')
    p('v_mov_b32 v76, 0'); p('v_mov_b32 v77, 0'); p('v_mov_b32 v78, 0'); p('v_mov_b32 v79, 0')
    p('v_cmp_gt_u32 vcc, 4, v1'); p('s_and_saveexec_b64 s[44:45], vcc')
    p('ds_write_b128 v74, v[76:79]')
    p('ds_write_b128 v74, v[60:63] offset:16')
    p('s_mov_b64 exec, s[44:45]')
    p.label('K1_NOP')
    vm.wait(tU)
    p(f'ds_write_b128 {vLW}, v[24:27] offset:{K1_UB + 448}')
    p('s_waitcnt lgkmcnt(0)')
    p('s_bitcmp1_b32 s2, 0'); p('s_lshl_b32 s35, s34, 16'); p('s_and_b32 s34, s34, 0xffff0000')
    p('s_bitcmp1_b32 s2, 0'); p('s_cselect_b32 s34, s34, s35'); p('s_mov_b32 s35, s34')
    p('s_barrier')
    A = lambda i: 48 + 4 * i
    B = lambda i: 80 + 4 * i
    ACC = lambda j: 112 + 4 * j
    ds = DSQ(p)
    def ldA(i, cl):
        ds.issue(f'ds_read_b64_tr_b16 v[{A(i)}:{A(i)+1}], {vKA} offset:{512*i + 64*cl + 8}')
        return ds.issue(f'ds_read_b64_tr_b16 v[{A(i)+2}:{A(i)+3}], {vKA} offset:{512*i + 64*cl}')
    def ldB(r, cl):
        return ds.issue(f'ds_read_b128 v[{B(r)}:{B(r)+3}], {vUB} offset:{512*r + 64*(1-cl)}')
    tA = {}; tB = {}
    tA[0] = ldA(0, 0)
    for r in range(8): tB[r] = ldB(r, 0)
    for i in range(1, 8): tA[i] = ldA(i, 0)
    first = set()
    def mfma(j, i, r):
        c = f'v[{ACC(j)}:{ACC(j)+3}]' if j in first else '0'
        first.add(j)
        p(f'v_mfma_f32_16x16x32_bf16 v[{ACC(j)}:{ACC(j)+3}], v[{A(i)}:{A(i)+3}], v[{B(r)}:{B(r)+3}], {c}')
    tA2 = {}; tB2 = {}
    for i in range(8):
        ds.wait(tA[i])
        for r in range(8 - i):
            ds.wait(tB[r])
            mfma(i + r, i, r)
        tA2[i] = ldA(i, 1); tB2[7 - i] = ldB(7 - i, 1)
    for sg in range(8):
        r = 7 - sg
        ds.wait(tA2[sg]); ds.wait(tB2[r])
        for i in range(sg + 1): mfma(i + r, i, r)
    for w in range(4):
        if w < 3:
            p(f's_cmp_eq_u32 s33, {w}'); p(f's_cbranch_scc0 K1_W{w+1}')
        for j in range(8):
            o = j >> 1
            if o == w: continue
            slot = 3 * j + ((w - o - 1) & 3)
            p(f'ds_write_b128 {vRL}, v[{ACC(j)}:{ACC(j)+3}] offset:{K1_RED + 1024*slot}')
        p('s_waitcnt lgkmcnt(0)'); p('s_barrier')
        for jj in range(2):
            j = 2 * w + jj
            for k in range(3):
                p(f'ds_read_b128 v[{48+16*jj+4*k}:{51+16*jj+4*k}], {vRL} offset:{K1_RED + 1024*(3*j+k)}')
            p(f'ds_read_b64 v[{60+16*jj}:{61+16*jj}], {vKV} offset:{512*jj}')
        vm2 = tE
        p('s_waitcnt vmcnt(0) lgkmcnt(0)')
        for jj in range(2):
            j = 2 * w + jj; a = ACC(j); t = 48 + 16 * jj
            for k in range(3):
                p(f'v_pk_add_f32 v[{a}:{a+1}], v[{a}:{a+1}], v[{t+4*k}:{t+4*k+1}]')
                p(f'v_pk_add_f32 v[{a+2}:{a+3}], v[{a+2}:{a+3}], v[{t+4*k+2}:{t+4*k+3}]')
            kv = 60 + 16 * jj; x = 28 + 2 * jj; sa = 32 + 4 * jj; sb = 40 + 4 * jj
            p(f'v_lshlrev_b32 v80, 16, v{kv}'); p(f'v_and_b32 v81, 0xffff0000, v{kv}')
            p(f'v_lshlrev_b32 v82, 16, v{kv+1}'); p(f'v_and_b32 v83, 0xffff0000, v{kv+1}')
            p(f'v_lshlrev_b32 v84, 16, v{x}'); p(f'v_and_b32 v85, 0xffff0000, v{x}')
            p(f'v_lshlrev_b32 v86, 16, v{x+1}'); p(f'v_and_b32 v87, 0xffff0000, v{x+1}')
            p(f'v_pk_fma_f32 v[{a}:{a+1}], v[80:81], s[34:35], v[{a}:{a+1}]')
            p(f'v_pk_fma_f32 v[{a+2}:{a+3}], v[82:83], s[34:35], v[{a+2}:{a+3}]')
            p(f'v_pk_fma_f32 v[88:89], v[84:85], v[{sa}:{sa+1}], v[{sb}:{sb+1}]')
            p(f'v_pk_fma_f32 v[90:91], v[86:87], v[{sa+2}:{sa+3}], v[{sb+2}:{sb+3}]')
            p(f'v_pk_fma_f32 v[88:89], v[88:89], v[{a}:{a+1}], v[84:85]')
            p(f'v_pk_fma_f32 v[90:91], v[90:91], v[{a+2}:{a+3}], v[86:87]')
            p(f'v_cvt_pk_bf16_f32 v{92+2*jj}, v88, v89'); p(f'v_cvt_pk_bf16_f32 v{93+2*jj}, v90, v91')
            p(f'buffer_store_dwordx2 v[{92+2*jj}:{93+2*jj}], {vE}, s[28:31], 0 offen offset:{512*jj}')
        p('s_endpgm')
        if w < 3: p.label(f'K1_W{w+1}')
    p.label('K1_END')
    p('s_endpgm')
    return p.finalize(), descriptor(name, 144), f'; @launch kernel={name} grid=(640,1,1) block=(256,1,1) lds={K1_LDS}'

K2_SLOT = 28672; K2_NS = 5; K2_LDS = K2_SLOT * K2_NS
def gen_k2():
    p = Prog(); name = 'k2_kernel'; header(p, name)
    p('s_cmp_ge_u32 s2, 256'); p('s_cbranch_scc1 K2_END')
    p('s_load_dwordx4 s[4:7], s[0:1], 56')
    p('s_load_dwordx2 s[8:9], s[0:1], 104')
    p('s_and_b32 s36, s2, 7'); p('s_lshr_b32 s37, s2, 3')
    p('s_lshr_b32 s38, s36, 1'); p('s_lshl_b32 s38, s38, 2'); p('s_and_b32 s39, s37, 3'); p('s_add_u32 s38, s38, s39')
    p('s_and_b32 s39, s36, 1'); p('s_lshl_b32 s39, s39, 3'); p('s_lshr_b32 s40, s37, 2'); p('s_add_u32 s39, s39, s40')
    p('v_and_b32 v1, 63, v0')
    p('v_lshrrev_b32 v2, 6, v0')
    p('s_nop 0')
    p('v_readfirstlane_b32 s33, v2')
    p('s_waitcnt lgkmcnt(0)')
    srd(p, 12, 4, D * F * 2); srd(p, 16, 6, F * 2)
    srd_ws(p, 20, 8, WS_HT, SZ_SD); srd_ws(p, 24, 8, WS_CS, F * 4); srd_ws(p, 28, 8, WS_HF, S * F * 2)
    p('s_cmp_ge_u32 s33, 4'); p('s_cbranch_scc1 K2_LOADER')
    p('v_lshrrev_b32 v3, 4, v1')
    p('v_bfe_u32 v4, v1, 2, 2')
    p('v_and_b32 v5, 3, v1')
    p('v_lshl_add_u32 v6, v3, 2, v4')
    p('v_and_b32 v7, 7, v6')
    p('s_lshl_b32 s41, s33, 1')
    for ti in range(2):
        p(f's_add_u32 s42, s41, {ti}')
        p(f'v_xor_b32 v8, s42, v7')
        p('v_lshlrev_b32 v8, 5, v8')
        p('v_lshl_add_u32 v8, v6, 8, v8')
        p(f'v_lshl_add_u32 v{10+ti}, v5, 3, v8')
    p('v_mul_u32_u24 v8, 192, v6'); p('v_lshl_add_u32 v8, v5, 3, v8'); p('v_add_u32 v8, 16384, v8')
    p('v_and_b32 v9, 1, v3'); p('v_lshlrev_b32 v9, 5, v9')
    p('v_add_u32 v12, v8, v9'); p('v_sub_u32 v13, v8, v9')
    p('s_mul_i32 s43, s39, 96')
    p('v_lshl_add_u32 v14, v3, 2, s43')
    p('v_lshlrev_b32 v15, 1, v14'); p('v_lshlrev_b32 v16, 2, v14')
    for ph in range(6): p(f'buffer_load_dwordx2 v[{20+2*ph}:{21+2*ph}], v15, s[16:19], 0 offen offset:{32*ph}')
    for ph in range(6): p(f'buffer_load_dwordx4 v[{32+4*ph}:{35+4*ph}], v16, s[24:27], 0 offen offset:{64*ph}')
    p('s_lshl_b32 s43, s38, 3'); p('s_add_u32 s43, s43, s41'); p('s_mul_i32 s43, s43, 48')
    p('s_mul_i32 s44, s39, 3'); p('s_add_u32 s43, s43, s44'); p('s_lshl_b32 s43, s43, 10')
    p('v_lshl_add_u32 v17, v1, 4, s43')
    p('s_mov_b32 s45, 0x3f803f80')
    for i in range(4): p(f'v_mov_b32 v{56+i}, 0')
    Wf = lambda s, ph: 64 + 32 * s + 4 * ph
    Hf = lambda s, ti: 64 + 32 * s + 24 + 4 * ti
    ACC = lambda ph, ti: 128 + 8 * ph + 4 * ti
    ds = DSQ(p)
    def set_slot(G):
        off = (G % K2_NS) * K2_SLOT
        p(f'v_add_u32 v60, {off}, v10'); p(f'v_add_u32 v61, {off}, v11')
        p(f'v_add_u32 v62, {off}, v12'); p(f'v_add_u32 v63, {off}, v13')
    def reads(s, k2):
        t = {}
        for ti in range(2):
            for h in range(2):
                t[('h', ti)] = ds.issue(f'ds_read_b64_tr_b16 v[{Hf(s,ti)+2*h}:{Hf(s,ti)+2*h+1}], v{60+ti} offset:{(32*k2+16*h)*256}')
        for ph in range(6):
            for h in range(2):
                t[('w', ph)] = ds.issue(f'ds_read_b64_tr_b16 v[{Wf(s,ph)+2*h}:{Wf(s,ph)+2*h+1}], v{62+(ph&1)} offset:{(32*k2+16*h)*192 + 32*ph}')
        return t
    started = set()
    def compute(s, t):
        for ti in range(2): ds.wait(t[('h', ti)])
        dots = []
        for ti in range(2):
            for e in range(4):
                dots.append(f'v_dot2_f32_bf16 v{56+ti}, v{Hf(s,ti)+e}, s45, v{56+ti}')
                dots.append(f'v_dot2_f32_bf16 v{58+ti}, v{Hf(s,ti)+e}, v{Hf(s,ti)+e}, v{58+ti}')
        order = []
        for e in range(4):
            for ti in range(2):
                order.append(dots[ti*8 + 2*e]); order.append(dots[ti*8 + 2*e + 1])
        di = 0
        for ph in range(6):
            ds.wait(t[('w', ph)])
            for ti in range(2):
                c = f'v[{ACC(ph,ti)}:{ACC(ph,ti)+3}]' if (ph, ti) in started else '0'
                started.add((ph, ti))
                p(f'v_mfma_f32_16x16x32_bf16 v[{ACC(ph,ti)}:{ACC(ph,ti)+3}], v[{Wf(s,ph)}:{Wf(s,ph)+3}], v[{Hf(s,ti)}:{Hf(s,ti)+3}], {c}')
                n = 2 if di < 8 else 1
                for _ in range(n):
                    if di < 16: p(order[di]); di += 1
        while di < 16: p(order[di]); di += 1
    p('s_barrier')
    set_slot(0)
    tA = reads(0, 0)
    for G in range(10):
        tB = reads(1, 1)
        compute(0, tA)
        if G < 9:
            ds.wait_all()
            p('s_barrier')
            set_slot(G + 1)
            tA = reads(0, 0)
        compute(1, tB)
    p('s_waitcnt vmcnt(0)')
    for i in range(4):
        p(f'v_mov_b32 v8, v{56+i}'); p(f'v_permlane16_swap_b32 v8, v{56+i}'); p(f'v_add_f32 v{56+i}, v8, v{56+i}')
        p(f'v_mov_b32 v8, v{56+i}'); p(f'v_permlane32_swap_b32 v8, v{56+i}'); p(f'v_add_f32 v{56+i}, v8, v{56+i}')
    for ti in range(2):
        p(f'v_mul_f32 v{56+ti}, {f32(1.0/640)}, v{56+ti}')
        p(f'v_mov_b32 v8, {f32(1e-5)}')
        p(f'v_fmac_f32 v8, {f32(1.0/640)}, v{58+ti}')
        p(f'v_fma_f32 v8, -v{56+ti}, v{56+ti}, v8')
        p('v_rsq_f32 v8, v8')
        p(f'v_mul_f32 v9, v{56+ti}, v8')
        p(f'v_sub_f32 v{84+2*ti}, 0, v9'); p(f'v_mov_b32 v{85+2*ti}, v{84+2*ti}')
        p(f'v_mov_b32 v{80+2*ti}, v8'); p(f'v_mov_b32 v{81+2*ti}, v8')
    RS = lambda ti: f'v[{80+2*ti}:{81+2*ti}]'
    NM = lambda ti: f'v[{84+2*ti}:{85+2*ti}]'
    c1 = -2.0 * 0.7978845608028654 * 1.4426950408889634; c2 = c1 * 0.044715
    p(f's_mov_b32 s46, {f32(c1)}'); p('s_mov_b32 s47, s46'); p(f's_mov_b32 s48, {f32(c2)}'); p('s_mov_b32 s49, s48')
    p('v_mov_b32 v66, s46'); p('v_mov_b32 v67, s46')
    p('s_mov_b32 s50, 1.0'); p('s_mov_b32 s51, 1.0'); p('s_mov_b32 s52, 49152')
    for ph in range(6):
        b = 20 + 2 * ph; o = 96 + 4 * ph
        p(f'v_lshlrev_b32 v{o}, 16, v{b}'); p(f'v_and_b32 v{o+1}, 0xffff0000, v{b}')
        p(f'v_lshlrev_b32 v{o+2}, 16, v{b+1}'); p(f'v_and_b32 v{o+3}, 0xffff0000, v{b+1}')
    for ti in range(2):
        for pp in range(3):
            outr = 68 + 4 * ((ti * 3 + pp) & 1)
            for hh in range(2):
                ph = 2 * pp + hh; a = ACC(ph, ti); cs = 32 + 4 * ph; bb = 96 + 4 * ph
                for u in range(2):
                    x = f'v[{a+2*u}:{a+2*u+1}]'
                    p(f'v_pk_fma_f32 v[76:77], v[{cs+2*u}:{cs+2*u+1}], {NM(ti)}, v[{bb+2*u}:{bb+2*u+1}]')
                    p(f'v_pk_fma_f32 {x}, {x}, {RS(ti)}, v[76:77]')
                    p(f'v_pk_mul_f32 v[78:79], {x}, {x}')
                    p(f'v_pk_fma_f32 v[78:79], v[78:79], s[48:49], v[66:67]')
                    p(f'v_pk_mul_f32 v[78:79], v[78:79], {x}')
                    p('v_exp_f32 v78, v78'); p('v_exp_f32 v79, v79')
                    p('v_pk_add_f32 v[78:79], v[78:79], s[50:51]')
                    p('v_rcp_f32 v78, v78'); p('v_rcp_f32 v79, v79')
                    p(f'v_pk_mul_f32 v[78:79], v[78:79], {x}')
                    p(f'v_cvt_pk_bf16_f32 v{outr+2*hh+u}, v78, v79')
            so = '0' if ti == 0 else 's52'
            p(f'buffer_store_dwordx4 v[{outr}:{outr+3}], v17, s[28:31], {so} offen offset:{1024*pp}')
    p('s_endpgm')
    p.label('K2_LOADER')
    p('s_sub_u32 s41, s33, 4')
    p('v_lshrrev_b32 v3, 4, v1')
    p('v_and_b32 v4, 15, v1')
    for par in range(2):
        p(f'v_add_u32 v5, {4*par}, v3')
        p('v_lshrrev_b32 v6, 1, v4'); p('v_xor_b32 v6, v6, v5'); p('v_lshlrev_b32 v6, 5, v6')
        p('v_and_b32 v7, 1, v4'); p('v_lshl_add_u32 v6, v7, 4, v6')
        p('v_lshl_add_u32 v6, v3, 12, v6')
        p('s_lshl_b32 s42, s38, 8')
        p(f'v_add_u32 v{10+par}, s42, v6')
    for j in range(3):
        p('s_mul_i32 s42, s41, 3'); p(f's_add_u32 s42, s42, {j}'); p('s_lshl_b32 s42, s42, 6')
        p('v_add_u32 v5, s42, v1')
        p('s_mov_b32 s43, 0x15555556'); p('v_mul_hi_u32 v6, v5, s43')
        p('v_mul_u32_u24 v7, 12, v6'); p('v_sub_u32 v7, v5, v7')
        p('v_lshrrev_b32 v8, 1, v7'); p('v_bfe_u32 v9, v6, 2, 1'); p('v_xor_b32 v8, v8, v9'); p('v_lshlrev_b32 v8, 5, v8')
        p('v_and_b32 v9, 1, v7'); p('v_lshl_add_u32 v8, v9, 4, v8')
        p('v_mul_u32_u24 v9, 3072, v6'); p('v_add_u32 v8, v8, v9')
        p('s_mul_i32 s42, s39, 192')
        p(f'v_add_u32 v{12+j}, s42, v8')
    vm = VMQ(p)
    tick = {}
    def dma(G):
        slot = (G % K2_NS) * K2_SLOT
        p(f's_lshl_b32 s44, s41, 16'); p(f's_add_u32 s44, s44, {64*G*4096}')
        p(f's_lshl_b32 s45, s41, 12'); p(f's_add_u32 s45, s45, {slot}')
        for q in range(4):
            p('s_mov_b32 m0, s45')
            vm.issue(f'buffer_load_dwordx4 v{10+(q&1)}, s[20:23], s44 offen lds')
            if q < 3: p('s_add_u32 s44, s44, 16384'); p('s_add_u32 s45, s45, 1024')
        p(f's_mov_b32 s44, {64*G*3072}')
        p('s_mul_i32 s45, s41, 3072'); p(f's_add_u32 s45, s45, {slot + 16384}')
        for j in range(3):
            p('s_mov_b32 m0, s45')
            tick[G] = vm.issue(f'buffer_load_dwordx4 v{12+j}, s[12:15], s44 offen lds')
            if j < 2: p('s_add_u32 s45, s45, 1024')
    for G in range(K2_NS): dma(G)
    for G in range(10):
        vm.wait(tick[G])
        p('s_barrier')
        if G >= 1 and G + K2_NS - 1 <= 9: dma(G + K2_NS - 1)
    p.label('K2_END')
    p('s_endpgm')
    return p.finalize(), descriptor(name, 176), f'; @launch kernel={name} grid=(256,1,1) block=(512,1,1) lds={K2_LDS}'

K3_SLOT = 20480; K3_NS = 7; K3_RES = K3_SLOT * K3_NS; K3_LDS = K3_RES + 10240
K3_LOOK = 12
def gen_k3():
    p = Prog(); name = 'k3_kernel'; header(p, name)
    p('s_cmp_ge_u32 s2, 256'); p('s_cbranch_scc1 K3_END')
    p('s_load_dwordx4 s[4:7], s[0:1], 72')
    p('s_load_dwordx2 s[10:11], s[0:1], 88')
    p('s_load_dwordx2 s[8:9], s[0:1], 104')
    p('s_and_b32 s36, s2, 7'); p('s_lshr_b32 s37, s2, 3')
    p('s_lshr_b32 s38, s36, 1'); p('s_lshl_b32 s38, s38, 3'); p('s_and_b32 s39, s37, 7'); p('s_add_u32 s38, s38, s39')
    p('s_and_b32 s39, s36, 1'); p('s_lshl_b32 s39, s39, 2'); p('s_lshr_b32 s40, s37, 3'); p('s_add_u32 s39, s39, s40')
    p('v_and_b32 v1, 63, v0'); p('v_lshrrev_b32 v2, 6, v0'); p('s_nop 0')
    p('v_readfirstlane_b32 s33, v2')
    p('s_waitcnt lgkmcnt(0)')
    srd(p, 12, 4, F * D * 2); srd(p, 16, 6, D * 2); srd(p, 20, 10, SZ_SD)
    srd_ws(p, 24, 8, WS_HT, SZ_SD); srd_ws(p, 28, 8, WS_HF, S * F * 2)
    p('s_cmp_ge_u32 s33, 4'); p('s_cbranch_scc1 K3_LOADER')
    p('v_lshrrev_b32 v3, 4, v1'); p('v_bfe_u32 v4, v1, 2, 2'); p('v_and_b32 v5, 3, v1')
    p('v_lshl_add_u32 v6, v3, 2, v4')
    p('v_mul_u32_u24 v10, 160, v6'); p('v_lshl_add_u32 v10, v5, 3, v10')
    p('s_lshl_b32 s41, s38, 2'); p('s_add_u32 s41, s41, s33')
    p('s_mul_i32 s42, s41, 49152')
    p('v_lshl_add_u32 v11, v1, 4, s42')
    vm = VMQ(p); tH = {}
    p('s_mul_i32 s43, s39, 80'); p('v_lshl_add_u32 v12, v3, 2, s43'); p('v_lshlrev_b32 v13, 1, v12')
    for dl in range(5): vm.issue(f'buffer_load_dwordx2 v[{20+2*dl}:{21+2*dl}], v13, s[16:19], 0 offen offset:{32*dl}')
    def ldH(k):
        p(f's_mov_b32 s44, {1024 * (k & ~3)}')
        tH[k] = vm.issue(f'buffer_load_dwordx4 a[{4*(k%16)}:{4*(k%16)+3}], v11, s[28:31], s44 offen offset:{1024*(k&3)}')
    for k in range(K3_LOOK): ldH(k)
    p('v_lshlrev_b32 v14, 7, v6'); p('v_lshl_add_u32 v14, v5, 3, v14'); p('s_lshl_b32 s45, s33, 5'); p(f's_add_u32 s45, s45, {K3_RES}')
    p('v_add_u32 v14, s45, v14')
    p('v_and_b32 v15, 15, v1'); p('s_lshl_b32 s46, s41, 4'); p('v_add_u32 v15, s46, v15')
    p('s_movk_i32 s47, 1280'); p('v_mul_lo_u32 v15, v15, s47'); p('v_add_u32 v15, v15, v13')
    Wf = lambda s, dl: 64 + 20 * s + 4 * dl
    ACC = lambda dl: 40 + 4 * dl
    ds = DSQ(p)
    def reads(s, G, k4):
        t = {}
        for dl in range(5):
            for h in range(2):
                t[dl] = ds.issue(f'ds_read_b64_tr_b16 v[{Wf(s,dl)+2*h}:{Wf(s,dl)+2*h+1}], v16 offset:{(32*k4+16*h)*160 + 32*dl}')
        return t
    started = set()
    def compute(s, t, k):
        vm.wait(tH[k])
        for dl in range(5):
            ds.wait(t[dl])
            c = f'v[{ACC(dl)}:{ACC(dl)+3}]' if dl in started else '0'
            started.add(dl)
            p(f'v_mfma_f32_16x16x32_bf16 v[{ACC(dl)}:{ACC(dl)+3}], v[{Wf(s,dl)}:{Wf(s,dl)+3}], a[{4*(k%16)}:{4*(k%16)+3}], {c}')
        if k + K3_LOOK < 48: ldH(k + K3_LOOK)
    p('s_barrier')
    p('v_mov_b32 v16, v10')
    t = reads(0, 0, 0)
    for k in range(48):
        G, k4 = divmod(k, 4); s = k & 1
        if k + 1 < 48:
            G1, k41 = divmod(k + 1, 4)
            if k41 == 0:
                ds.wait_all()
                p('s_barrier')
                p(f'v_add_u32 v16, {(G1 % K3_NS) * K3_SLOT}, v10')
            tn = reads(1 - s, G1, k41)
        compute(s, t, k)
        if k + 1 < 48: t = tn
    p('s_barrier')
    for dl in range(5): p(f'ds_read_b64_tr_b16 v[{104+2*dl}:{105+2*dl}], v14 offset:{16*128*dl}')
    p('s_waitcnt lgkmcnt(0)')
    for dl in range(5):
        a = ACC(dl); b = 20 + 2 * dl; r = 104 + 2 * dl
        p(f'v_lshlrev_b32 v116, 16, v{b}'); p(f'v_and_b32 v117, 0xffff0000, v{b}')
        p(f'v_lshlrev_b32 v118, 16, v{b+1}'); p(f'v_and_b32 v119, 0xffff0000, v{b+1}')
        p(f'v_pk_add_f32 v[{a}:{a+1}], v[{a}:{a+1}], v[116:117]'); p(f'v_pk_add_f32 v[{a+2}:{a+3}], v[{a+2}:{a+3}], v[118:119]')
        p(f'v_lshlrev_b32 v116, 16, v{r}'); p(f'v_and_b32 v117, 0xffff0000, v{r}')
        p(f'v_lshlrev_b32 v118, 16, v{r+1}'); p(f'v_and_b32 v119, 0xffff0000, v{r+1}')
        p(f'v_pk_add_f32 v[{a}:{a+1}], v[{a}:{a+1}], v[116:117]'); p(f'v_pk_add_f32 v[{a+2}:{a+3}], v[{a+2}:{a+3}], v[118:119]')
        p(f'v_cvt_pk_bf16_f32 v{120+2*dl}, v{a}, v{a+1}'); p(f'v_cvt_pk_bf16_f32 v{121+2*dl}, v{a+2}, v{a+3}')
        p(f'buffer_store_dwordx2 v[{120+2*dl}:{121+2*dl}], v15, s[20:23], 0 offen offset:{32*dl}')
    p('s_endpgm')
    p.label('K3_LOADER')
    p('s_sub_u32 s41, s33, 4')
    for j in range(5):
        p('s_mul_i32 s42, s41, 5'); p(f's_add_u32 s42, s42, {j}'); p('s_lshl_b32 s42, s42, 6')
        p('v_add_u32 v5, s42, v1')
        p('s_mov_b32 s43, 0x1999999a'); p('v_mul_hi_u32 v6, v5, s43')
        p('v_mul_u32_u24 v7, 10, v6'); p('v_sub_u32 v7, v5, v7')
        p('v_mul_u32_u24 v8, 1280, v6'); p('v_lshl_add_u32 v8, v7, 4, v8')
        p('s_mul_i32 s42, s39, 160')
        p(f'v_add_u32 v{10+j}, s42, v8')
    p('v_lshrrev_b32 v5, 3, v1'); p('v_and_b32 v6, 7, v1'); p('v_lshlrev_b32 v5, 12, v5'); p('v_lshl_add_u32 v5, v6, 4, v5')
    p('s_mul_i32 s42, s39, 80'); p('s_lshl_b32 s42, s42, 12'); p('s_lshl_b32 s43, s38, 7'); p('s_add_u32 s42, s42, s43')
    p('v_add_u32 v15, s42, v5')
    vm = VMQ(p); tick = {}
    def dma(G):
        slot = (G % K3_NS) * K3_SLOT
        p(f's_mov_b32 s44, {128*G*1280}')
        p('s_mul_i32 s45, s41, 5120'); p(f's_add_u32 s45, s45, {slot}')
        for j in range(5):
            p('s_mov_b32 m0, s45')
            tick[G] = vm.issue(f'buffer_load_dwordx4 v{10+j}, s[12:15], s44 offen lds')
            if j < 4: p('s_add_u32 s45, s45, 1024')
    def dma_res():
        for rep in range(3):
            lab = f'K3_RS{rep}'
            p(f's_add_u32 s46, s41, {4*rep}')
            if rep == 2: p('s_cmp_ge_u32 s46, 10'); p(f's_cbranch_scc1 {lab}')
            p('s_lshl_b32 s44, s46, 15')
            p('s_lshl_b32 s45, s46, 10'); p(f's_add_u32 s45, s45, {K3_RES}')
            p('s_mov_b32 m0, s45')
            p('buffer_load_dwordx4 v15, s[24:27], s44 offen lds')
            if rep == 2: p.label(lab)
    for G in range(K3_NS): dma(G)
    for G in range(12):
        vm.wait(tick[G])
        p('s_barrier')
        if G >= 1 and G + K3_NS - 1 <= 11: dma(G + K3_NS - 1)
        if G == 11: pass
    dma_res()
    p('s_waitcnt vmcnt(0)')
    p('s_barrier')
    p.label('K3_END')
    p('s_endpgm')
    return p.finalize(), descriptor(name, 132 + 64, accum=132), f'; @launch kernel={name} grid=(256,1,1) block=(512,1,1) lds={K3_LDS}'

def build(path, kernels, extra_launch=()):
    parts = [g() for g in kernels]
    s = '; generated by dev/gen.py\n'
    for body, desc, launch in parts: s += launch + '\n'
    for l in extra_launch: s += l + '\n'
    s += '.amdgcn_target "amdgcn-amd-amdhsa--gfx950"\n.text\n'
    for body, desc, launch in parts: s += body
    s += '.section .rodata,"a"\n.p2align 6\n'
    for body, desc, launch in parts: s += desc
    open(path, 'w').write(s)

if __name__ == '__main__':
    out = sys.argv[1] if len(sys.argv) > 1 else 'v1.s'
    build(out, [gen_k0, gen_k1, gen_k2, gen_k3])
    print('wrote', out)
```
